```python
import torch

def _softmax(x, axis=-1):
    return torch.softmax(x, dim=axis)
def _gelu(x):
    return torch.nn.functional.gelu(x, approximate="tanh")
def _silu(x):
    return torch.nn.functional.silu(x)
def _sigmoid(x):
    return torch.sigmoid(x)
def _layernorm(x, axis=-1, eps=1e-5):
    m = x.mean(dim=axis, keepdim=True)
    v = x.var(dim=axis, keepdim=True, unbiased=False)
    return (x - m) / torch.sqrt(v + eps)
def _scatter_add(tgt, idx, src, axis=0):
    return tgt.clone().index_add_(axis, idx, src)
def _segment_sum(src, seg, n):
    out = torch.zeros((n,) + src.shape[1:], dtype=src.dtype)
    return out.index_add_(0, seg, src)
def _pad(x, pw):
    flat = tuple(v for pair in reversed(pw) for v in pair)
    return torch.nn.functional.pad(x, flat)

kernel_name = 'parallel_sum__linear_kernel_hedgehog__swiglu_ffn__prompt'

def setup_inputs():

    _w = (lambda a: (lambda t: t.to(torch.bfloat16) if t.is_floating_point() else t)(torch.as_tensor(a)))
    def _A_setup():
        B, S, D, H = 1, 2048, 512, 32
        Dh = D // H
        return {
            "x": _w((lambda *s: torch.randn(*s, dtype=torch.bfloat16) * 0.05)(B, S, D)),
            "wqkv": _w((lambda *s: torch.randn(*s, dtype=torch.bfloat16) * 0.4)(D, 3 * D)),
            "w_phi": _w((lambda *s: torch.randn(*s, dtype=torch.bfloat16) * 0.4)(H, Dh, Dh) * (Dh ** -0.5)),
            "wo": _w((lambda *s: torch.randn(*s, dtype=torch.bfloat16) * 0.1)(D, D)),
        }
    _A_in = _A_setup()

    def _B_setup():
        B, S, D, F = 1, 2048, 512, 1792
        return {
            "x": _w((lambda *s: torch.randn(*s, dtype=torch.bfloat16) * 0.05)(B, S, D)),
            "w_gate": _w((lambda *s: torch.randn(*s, dtype=torch.bfloat16) * 0.05)(D, F)),
            "w_up": _w((lambda *s: torch.randn(*s, dtype=torch.bfloat16) * 0.05)(D, F)),
            "w_down": _w((lambda *s: torch.randn(*s, dtype=torch.bfloat16) * 0.05)(F, D)),
        }
    _B_in = _B_setup()

    return {
        "A_x": _A_in["x"],
        "A_wqkv": _A_in["wqkv"],
        "A_w_phi": _A_in["w_phi"],
        "A_wo": _A_in["wo"],
        "B_x": _B_in["x"],
        "B_w_gate": _B_in["w_gate"],
        "B_w_up": _B_in["w_up"],
        "B_w_down": _B_in["w_down"],
    }

def reference(A_x, A_wqkv, A_w_phi, A_wo, B_x, B_w_gate, B_w_up, B_w_down):
    def _A_ref(x, wqkv, w_phi, wo):
        B, S, D = x.shape
        H = 32; Dh = D // H
        qkv = (lambda x, *d: x.permute(*d))((x @ wqkv).reshape(B, S, 3, H, Dh), 2, 0, 3, 1, 4)
        q, k, v = qkv[0], qkv[1], qkv[2]
        pq = torch.einsum("bhsd,hdf->bhsf", q, w_phi)
        pk = torch.einsum("bhsd,hdf->bhsf", k, w_phi)
        phi_q = torch.concatenate([_softmax(pq, axis=-1), _softmax(-pq, axis=-1)], axis=-1)
        phi_k = torch.concatenate([_softmax(pk, axis=-1), _softmax(-pk, axis=-1)], axis=-1)
        kv = torch.einsum("bhsf,bhsd->bhfd", phi_k, v)
        z  = torch.einsum("bhsf->bhf", phi_k)
        num = torch.einsum("bhqf,bhfd->bhqd", phi_q, kv)
        den = torch.einsum("bhqf,bhf->bhq", phi_q, z)[..., None] + 1e-6
        o = num / den
        return (lambda x, *d: x.permute(*d))(o, 0, 2, 1, 3).reshape(B, S, D) @ wo

    def _B_ref(x, w_gate, w_up, w_down):
        g = _silu(x @ w_gate)
        u = x @ w_up
        return (g * u) @ w_down

    x = A_x
    xn = _layernorm(x, axis=-1)
    return x + _A_ref(xn, A_wqkv, A_w_phi, A_wo) + _B_ref(xn, B_w_gate, B_w_up, B_w_down)
```

```python
import re

TRANS = ("v_exp_f32", "v_log_f32", "v_rcp_f32", "v_rsq_f32", "v_sqrt_f32", "v_sin_f32", "v_cos_f32")


class Op:
    __slots__ = ("text", "kind", "tag")

    def __init__(self, text, kind="i", tag=None):
        self.text, self.kind, self.tag = text, kind, tag

    def __repr__(self):
        return f"Op({self.text!r},{self.kind},{self.tag})"


def I(text):
    return Op(text)


def VM(text, tag=None):
    return Op(text, "vm", tag)


def DS(text, tag=None):
    return Op(text, "ds", tag)


def WVM(tag):
    return Op(None, "wvm", tag)


def WDS(tag):
    return Op(None, "wds", tag)


def LABEL(name):
    return Op(name + ":", "label")


_REG = re.compile(r"\b([vsa])(\d+)\b|\b([vsa])\[(\d+):(\d+)\]")


def regs_of(operand):
    out = set()
    for m in _REG.finditer(operand):
        if m.group(1):
            out.add((m.group(1), int(m.group(2))))
        else:
            for r in range(int(m.group(4)), int(m.group(5)) + 1):
                out.add((m.group(3), r))
    if re.search(r"\bvcc\b", operand):
        out.add(("s", "vcc"))
    if re.search(r"\bexec\b", operand):
        out.add(("s", "exec"))
    if re.search(r"\bm0\b", operand):
        out.add(("s", "m0"))
    return out


def split_operands(rest):
    ops, depth, cur = [], 0, ""
    for ch in rest:
        if ch in "[(":
            depth += 1
        if ch in "])":
            depth -= 1
        if ch == "," and depth == 0:
            ops.append(cur.strip())
            cur = ""
        else:
            cur += ch
    if cur.strip():
        ops.append(cur.strip())
    return ops


class Info:
    def __init__(self, text):
        t = text.split(";")[0].strip()
        parts = t.split(None, 1)
        self.mn = mn = parts[0]
        ops = split_operands(parts[1]) if len(parts) > 1 else []
        self.valu = mn.startswith("v_") and not mn.startswith("v_mfma")
        self.mfma = mn.startswith("v_mfma")
        self.trans = any(mn.startswith(x) for x in TRANS)
        self.dot = mn.startswith("v_dot")
        self.dpp = "row_" in t or "quad_perm" in t or mn.endswith("_dpp")
        self.permlane = mn.startswith("v_permlane")
        self.salu = mn.startswith("s_")
        self.vmem = mn.startswith(("buffer_", "global_"))
        self.ds = mn.startswith("ds_")
        self.ldsdma = self.vmem and re.search(r"\blds\b", t) is not None
        self.wide_store = self.vmem and "store" in mn and ("x4" in mn or "x3" in mn)
        self.w, self.r = set(), set()
        self.srcc = set()
        self.nop = 0
        if mn == "s_nop":
            self.nop = int(ops[0], 0) + 1
            return
        R = [regs_of(o) for o in ops]
        if self.mfma:
            self.w = R[0]
            self.r = R[1] | R[2] | R[3]
            self.ab = R[1] | R[2]
            self.srcc = R[3]
        elif self.valu:
            if mn.startswith("v_cmp"):
                self.w = R[0]
                self.r = set().union(*R[1:])
            elif self.permlane:
                self.w = R[0] | R[1]
                self.r = R[0] | R[1]
            elif mn.startswith(("v_readfirstlane", "v_readlane")):
                self.w = R[0]
                self.r = set().union(*R[1:])
            else:
                self.w = R[0]
                self.r = set().union(*R[1:]) if len(R) > 1 else set()
                if mn.startswith(("v_fmac", "v_dot2c")) or self.dpp:
                    self.r |= R[0]
                if mn.startswith("v_cndmask") and len(ops) == 3:
                    self.r.add(("s", "vcc"))
        elif self.vmem:
            if self.ldsdma:
                self.r = set().union(*R) | {("s", "m0")}
            elif "load" in mn:
                self.w = R[0]
                self.r = set().union(*R[1:])
            else:
                self.r = set().union(*R)
                self.data = R[0] if mn.startswith("buffer_") else R[1]
        elif self.ds:
            if mn.startswith(("ds_read", "ds_bpermute", "ds_swizzle")):
                self.w = R[0]
                self.r = set().union(*R[1:])
            else:
                self.r = set().union(*R)
        elif self.salu:
            if mn.startswith(("s_cmp", "s_cbranch", "s_branch", "s_waitcnt", "s_barrier", "s_setprio", "s_sleep",
                              "s_endpgm", "s_bitcmp")):
                self.r = set().union(*R) if R else set()
            else:
                self.w = R[0] if R else set()
                self.r = set().union(*R[1:]) if len(R) > 1 else set()
                if "saveexec" in mn:
                    self.w = self.w | {("s", "exec")}
        else:
            raise ValueError("cannot classify: " + text)
        assert not self.mfma or "32x32x16" in mn, "hazard table assumes the 8-pass MFMA"


def vregs(s):
    return {x for x in s if x[0] in "va"}


def sregs(s):
    return {x for x in s if x[0] == "s"}


def need_states(p, c):
    n = 0
    pw, cr, cw = p.w, c.r, c.w
    if p.valu:
        if c.mfma and vregs(pw) & cr:
            n = max(n, 2)
        if (c.permlane or c.dpp) and vregs(pw) & cr:
            n = max(n, 2)
        if c.mn.startswith(("v_readfirstlane", "v_readlane")) and vregs(pw) & cr:
            n = max(n, 1)
        if p.trans and c.valu and not c.trans and vregs(pw) & cr:
            n = max(n, 1)
        if p.trans and (c.ds or c.vmem or c.mfma) and vregs(pw) & cr:
            n = max(n, 2)
        if p.dot and vregs(pw) & (cr | cw) and not (c.dot and c.mn == p.mn):
            n = max(n, 3)
        if sregs(pw) & cr:
            if c.vmem:
                n = max(n, 5)
            elif c.valu or c.mfma:
                n = max(n, 4 if c.mn.startswith(("v_readlane", "v_writelane")) else 2)
            elif c.salu:
                n = max(n, 1)
        if ("s", "exec") in pw:
            n = max(n, 5)
    if p.mfma:
        if c.mfma:
            if pw & c.ab:
                n = max(n, 12)
            if pw & c.srcc and pw != c.srcc:
                n = max(n, 10)
            if pw & cw and not (pw == cw and c.srcc == pw):
                n = max(n, 10)
        elif (c.valu and pw & (cr | cw)) or ((c.vmem or c.ds) and pw & (cr | cw)):
            n = max(n, 12)
        if c.valu and p.srcc & cw:
            n = max(n, 7)
    if p.salu and ("s", "m0") in pw and c.ldsdma:
        n = max(n, 1)
    if p.wide_store and (c.valu or c.ds or c.vmem or c.mfma) and p.data & cw:
        n = max(n, 2)
    return n


class Stream:
    def __init__(self):
        self.ops = []

    def __call__(self, *items):
        for it in items:
            if isinstance(it, str):
                for line in it.split("\n"):
                    line = line.strip()
                    if not line:
                        continue
                    if line.endswith(":"):
                        self.ops.append(Op(line, "label"))
                    elif line.startswith("."):
                        self.ops.append(Op(line, "dir"))
                    elif line.startswith(("buffer_", "global_")):
                        self.ops.append(VM(line))
                    elif line.startswith("ds_"):
                        self.ops.append(DS(line))
                    else:
                        self.ops.append(I(line))
            elif isinstance(it, Op):
                self.ops.append(it)
            elif isinstance(it, Stream):
                self.ops.extend(it.ops)
            else:
                self(*it)
        return self

    def finalize(self):
        vm, ds = [], []
        res = []
        for op in self.ops:
            if op.kind == "vm":
                vm.append(op.tag)
                res.append(op.text)
            elif op.kind == "ds":
                ds.append(op.tag)
                res.append(op.text)
            elif op.kind in ("wvm", "wds"):
                lst = vm if op.kind == "wvm" else ds
                idx = max((i for i, t in enumerate(lst) if t == op.tag), default=None)
                if idx is None:
                    continue
                n = len(lst) - 1 - idx
                lim = 63 if op.kind == "wvm" else 15
                n = min(n, lim)
                del lst[: len(lst) - n]
                res.append(f"s_waitcnt {'vmcnt' if op.kind == 'wvm' else 'lgkmcnt'}({n})")
            else:
                if op.kind == "i" and op.text.startswith("s_waitcnt"):
                    m = re.search(r"vmcnt\((\d+)\)", op.text)
                    if m:
                        n = int(m.group(1))
                        del vm[: max(0, len(vm) - n)]
                    m = re.search(r"lgkmcnt\((\d+)\)", op.text)
                    if m:
                        n = int(m.group(1))
                        del ds[: max(0, len(ds) - n)]
                res.append(op.text)
        out, hist = [], []
        for line in res:
            if line.endswith(":") or line.startswith("."):
                out.append(line)
                continue
            c = Info(line)
            need, dist = 0, 0
            for p in reversed(hist):
                if dist >= 12:
                    break
                if not p.nop:
                    need = max(need, need_states(p, c) - dist)
                dist += p.nop or 1
            if need > 0:
                nop = f"s_nop {need - 1}"
                out.append(nop)
                hist.append(Info(nop))
            out.append(line)
            hist.append(c)
            if len(hist) > 16:
                hist.pop(0)
        return out


def interleave(main, extra, start=0, per=1, slots=None):
    out, k = [], 0
    extra = list(extra)
    for i, g in enumerate(main):
        out.extend(g)
        n = slots[i] if slots is not None else (per if i >= start else 0)
        e = min(k + n, len(extra))
        while 0 < e < len(extra) and ((extra[e].text or "").startswith(("s_cselect", "s_addc", "s_subb", "s_cbranch"))
                                      or (extra[e].text or "").endswith(" lds")):
            e += 1
        out.extend(extra[k:e])
        k = max(k, e)
    out.extend(extra[k:])
    return out


def ops(text):
    s = Stream()
    s(text)
    return s.ops
```

```python
import sys
from asmgen import *

NAME = "parallel_sum__linear_kernel_hedgehog__swiglu_ffn__prompt"
STAMPS = "--stamps" in sys.argv

WS_A2 = 0
WS_KVP = 0x900000
WS_ZP = 0x980000
WS_KVF = 0x990000
WS_STAMP = 0xA00000
WS_SIZE = 0x1000000
OOB = 0x7FFFFF00

RING = 6
L_X = 32768
L_H = 98304
L_PHI = 98304
PHI_RS, PHI_HS = 72, 128 * 72
L_V = L_PHI + 4 * PHI_HS
V_RS = 168
L_KVA = 131072
L_RS = L_V + 128 * V_RS
L_WPHI = L_RS + 1024
assert L_WPHI + 2048 <= 163840

LOG2E = 0x3FB8AA3B
NLOG2E = 0xBFB8AA3B

XN, ACC, WF = 128, 64, 32
S_WAVE, S_W, S_TG, S_P, S_ROT = "s3", "s4", "s5", "s6", "s7"
SRD_X, SRD_QKV, SRD_GU, SRD_WS, SRD_DBG, SRD_T = "s[8:11]", "s[12:15]", "s[16:19]", "s[20:23]", "s[24:27]", "s[28:31]"


def vr(a, n=1):
    return f"v{a}" if n == 1 else f"v[{a}:{a + n - 1}]"


class Stamper:
    def __init__(self):
        self.n = 0

    def __call__(self):
        if not STAMPS or self.n >= 15:
            return []
        self.n += 1
        r = 64 + 2 * self.n
        return [I(f"s_memtime s[{r}:{r + 1}]")]

    def start(self):
        return [I("s_memrealtime s[64:65]")] + self() if STAMPS else []

    def dump(self, base):
        if not STAMPS:
            return []
        s = Stream()
        s("s_waitcnt lgkmcnt(0)")
        s(f"s_lshl_b32 s40, s2, 3\ns_add_u32 s40, s40, {S_WAVE}\ns_lshl_b32 s40, s40, 6\ns_add_u32 s40, s40, {base}")
        s("v_mov_b32 v14, 0")
        for i in range(self.n + 1):
            s(f"v_mov_b32 v15, s{64 + 2 * i}")
            s(f"buffer_store_dword v15, v14, {SRD_WS}, s40 offen offset:{4 * i}")
        return s.ops


def srd(n, lo, size):
    return f"s_mov_b32 s{n}, s{lo}\ns_mov_b32 s{n + 1}, s{lo + 1}\ns_mov_b32 s{n + 2}, {size:#x}\ns_mov_b32 s{n + 3}, 0x20000"


UNITS = {"D": [("kv", 4), ("gu", 4), ("half", 2)], "Q": [("gu", 4), ("gu", 4), ("q", 2)]}


def stage_table(ty):
    out = []
    for u, (kind, nch) in enumerate(UNITS[ty]):
        per = 4 if nch == 4 else 8
        for s0 in range(0, 32, per):
            out.append((u, kind, s0, per))
    return out


def mfma_order(ty):
    out = []
    for u, (kind, nch) in enumerate(UNITS[ty]):
        head = 4 if u > 0 else 0
        tail = 4 if nch == 4 else 0
        seq = []
        for j in range(nch):
            seq += [(j, s) for s in range(head)]
        for s in range(head, 32 - tail):
            seq += [(j, s) for j in range(nch)]
        for j in range(nch):
            seq += [(j, s) for s in range(32 - tail, 32)]
        out += [(u, kind, nch, j, s) for j, s in seq]
    return out


def prologue1():
    s = Stream()
    s("s_cmp_ge_u32 s2, 256\ns_cbranch_scc1 L1_end")
    s("s_load_dwordx16 s[40:55], s[0:1], 0\ns_load_dwordx4 s[56:59], s[0:1], 64\ns_load_dwordx2 s[60:61], s[0:1], 80")
    s("v_lshrrev_b32 v2, 6, v0\nv_and_b32 v1, 63, v0")
    s(f"v_readfirstlane_b32 {S_WAVE}, v2")
    s("s_and_b32 s62, s2, 7\ns_lshr_b32 s63, s2, 3")
    s(f"s_and_b32 {S_W}, {S_WAVE}, 3")
    s(f"s_lshr_b32 {S_TG}, s62, 2\ns_lshl_b32 {S_TG}, {S_TG}, 3\ns_lshr_b32 s36, s63, 2\ns_add_u32 {S_TG}, {S_TG}, s36")
    s("s_and_b32 s37, s63, 3")
    s(f"s_lshl_b32 {S_ROT}, s37, 1\ns_add_u32 {S_ROT}, {S_ROT}, s36\ns_and_b32 {S_ROT}, {S_ROT}, 7")
    s(f"s_and_b32 {S_P}, s62, 3\ns_lshl_b32 {S_P}, {S_P}, 1\ns_lshr_b32 s38, s37, 1\ns_add_u32 {S_P}, {S_P}, s38")
    s("s_and_b32 s39, s37, 1")
    s("s_waitcnt lgkmcnt(0)")
    s(srd(20, 60, WS_SIZE))
    return s


def compute1(ty):
    st = Stamper()
    s = Stream()
    s(st.start())
    s("s_setprio 1")
    s(srd(8, 40, 0x200000))
    s("v_lshrrev_b32 v18, 3, v1\nv_lshlrev_b32 v18, 10, v18")
    s("v_lshrrev_b32 v19, 4, v1\nv_and_b32 v20, 7, v1\nv_xor_b32 v21, v20, v19\nv_lshl_add_u32 v16, v21, 4, v18")
    s("v_xor_b32 v17, 64, v16")
    s(f"s_lshl_b32 s40, {S_TG}, 17\ns_lshl_b32 s41, {S_W}, 15\ns_add_u32 s40, s40, s41")
    s(f"s_add_u32 s41, s41, {L_X}")

    def xdma(c):
        o = ops(f"s_add_u32 s42, {S_ROT}, {c}\ns_and_b32 s42, s42, 7\ns_lshl_b32 s42, s42, 7\ns_add_u32 s42, s42, s40")
        for q in range(4):
            o += ops(f"s_add_u32 m0, s41, {c * 4096 + q * 1024}")
            o += ops(f"s_add_u32 s43, s42, {q * 8192}")
            o.append(VM(f"buffer_load_dwordx4 v{16 + (q & 1)}, {SRD_X}, s43 offen lds", f"x{c}"))
        return o

    for c in range(3):
        s(xdma(c))
    s("v_and_b32 v18, 31, v1\nv_lshrrev_b32 v19, 5, v1")
    s("v_bfe_u32 v20, v1, 1, 3\nv_xor_b32 v20, v20, v19\nv_lshlrev_b32 v20, 4, v20\nv_lshl_add_u32 v20, v18, 7, v20")
    s("v_add_u32 v2, s41, v20\nv_xor_b32 v3, 32, v2\nv_xor_b32 v4, 64, v2\nv_xor_b32 v5, 0x60, v2")
    s(f"s_lshl_b32 s44, {S_W}, 13\ns_add_u32 s44, s44, {L_H}\nv_lshl_add_u32 v10, v1, 4, s44")
    if ty == "D":
        s(f"s_lshl_b32 s44, {S_W}, 5\nv_add_u32 v20, s44, v18\nv_mul_u32_u24 v20, {V_RS}, v20")
        s(f"v_lshl_add_u32 v20, v19, 3, v20\nv_add_u32 v11, {L_V}, v20")
    s(f"s_lshl_b32 s44, {S_W}, 8\ns_add_u32 s44, s44, {L_RS}\nv_lshl_add_u32 v13, v18, 3, s44")
    s("v_bfe_u32 v22, v1, 4, 1\nv_bfe_u32 v23, v1, 2, 2\nv_and_b32 v24, 3, v1\nv_bfe_u32 v25, v1, 3, 1")

    def wbase(kind, dst):
        o = Stream()
        if kind == "gu":
            o(f"v_lshlrev_b32 v26, 11, v22\nv_lshl_add_u32 v26, v19, 10, v26\nv_lshl_add_u32 v26, v23, 7, v26")
            o(f"v_lshl_add_u32 v27, v22, 1, v25\nv_lshl_add_u32 v26, v27, 5, v26")
        elif kind in ("kv", "q"):
            o(f"v_lshlrev_b32 v26, 10, v19\nv_lshl_add_u32 v26, v23, 7, v26")
            o(f"v_lshl_add_u32 v27, v25, 1, v22\nv_lshl_add_u32 v26, v27, 5, v26")
        else:
            o(f"v_lshlrev_b32 v26, 10, v22\nv_lshl_add_u32 v26, v19, 9, v26\nv_lshl_add_u32 v26, v23, 6, v26")
            o(f"v_lshl_add_u32 v26, v22, 5, v26")
        o(f"v_lshl_add_u32 v{dst}, v24, 3, v26")
        return o.ops

    kinds = []
    for kind, _ in UNITS[ty]:
        if kind not in kinds:
            kinds.append(kind)
    breg = {k: r for k, r in zip(kinds, (14, 6, 7))}
    for k in kinds:
        s(wbase(k, breg[k]))

    def chain_xor(kind, j):
        if kind == "gu":
            return j << 5
        if kind == "kv":
            return ((j & 1) << 6) | ((j >> 1) << 11)
        if kind == "q":
            return j << 6
        return j << 5

    def set_waddr(kind, nch, hi):
        o = []
        for j in range(nch):
            o += ops(f"v_xor_b32 v{2 + j}, {chain_xor(kind, j) | (0x10000 if hi else 0):#x}, v{breg[kind]}")
        return o

    s("s_mov_b32 s45, 0x3f803f80\nv_mov_b32 v28, 0\nv_mov_b32 v29, 0\nv_mov_b32 v30, 0\nv_mov_b32 v31, 0")

    def xread(c):
        return [DS(f"ds_read_b128 {vr(XN + 16 * c + 4 * k, 4)}, v{2 + k} offset:{c * 4096}", f"xr{c}") for k in range(4)]

    def xstat(c):
        o = []
        for r in range(16):
            x = XN + 16 * c + r
            o += ops(f"v_dot2_f32_bf16 v{28 + (r & 1)}, v{x}, s45, v{28 + (r & 1)}")
            o += ops(f"v_dot2_f32_bf16 v{30 + (r & 1)}, v{x}, v{x}, v{30 + (r & 1)}")
        return o

    for c in range(8):
        s(WVM(f"x{c}"), xread(c))
        if c + 3 < 8:
            s(xdma(c + 3))
        if c > 0:
            s(WDS(f"xr{c - 1}"), xstat(c - 1))
    s(WDS("xr7"))
    s(st())
    s("s_barrier")
    s(st())

    order = mfma_order(ty)
    stages = stage_table(ty)
    nm = len(order)

    def frag_loc(i):
        u, kind, nch, j, ks = order[i]
        n = next(k for k, (uu, _, s0, per) in enumerate(stages) if uu == u and s0 <= ks < s0 + per)
        kk = ks - stages[n][2]
        off = (n % RING) * 16384 + kk * (4096 if nch == 4 else 2048)
        return n, kind, nch, j, off

    state = {"kind": None, "hi": None, "stage": 0}

    def reads(i):
        n, kind, nch, j, off = frag_loc(i)
        o = []
        if n != state["stage"]:
            assert n == state["stage"] + 1
            state["stage"] = n
            o += [WDS("ho"), I("s_barrier")]
            if n % 4 == 0:
                o += st()
        hi = off >= 65536
        if (kind, hi) != (state["kind"], state["hi"]):
            o += set_waddr(kind, nch, hi)
            state["kind"], state["hi"] = kind, hi
        off &= 0xFFFF
        d = WF + 4 * (i % 8)
        step = 256 if kind == "half" else 512
        o.append(DS(f"ds_read_b64_tr_b16 {vr(d, 2)}, v{2 + j} offset:{off}", f"f{i}"))
        o.append(DS(f"ds_read_b64_tr_b16 {vr(d + 2, 2)}, v{2 + j} offset:{off + step}", f"f{i}"))
        return o

    for i in range(8):
        s(reads(i))
    s(xstat(7))
    s("v_add_f32 v28, v28, v29\nv_add_f32 v30, v30, v31")
    s("v_permlane32_swap_b32 v28, v30\nv_add_f32 v28, v28, v30\nv_mov_b32 v30, v28\nv_permlane32_swap_b32 v28, v30")
    s("v_mul_f32 v28, 0x3b000000, v28\nv_mul_f32 v30, 0x3b000000, v30")
    s("v_cvt_pk_bf16_f32 v29, v28, v28\nv_lshlrev_b32 v8, 16, v29")
    s("s_mov_b32 s46, 0xffff0000")

    def center(ks):
        o = []
        for half in range(2):
            for r in range(2):
                x = XN + 4 * ks + 2 * half + r
                t = 16 + 4 * half + 2 * r
                o += ops(f"v_lshlrev_b32 v{t}, 16, v{x}\nv_and_b32 v{t + 1}, s46, v{x}")
            for r in range(2):
                t = 16 + 4 * half + 2 * r
                o += ops(f"v_sub_f32 v{t}, v{t}, v8\nv_sub_f32 v{t + 1}, v{t + 1}, v8")
            for r in range(2):
                x = XN + 4 * ks + 2 * half + r
                t = 16 + 4 * half + 2 * r
                o += ops(f"v_cvt_pk_bf16_f32 v{x}, v{t}, v{t + 1}")
        return o

    s(center(0))
    late = Stream()
    late("v_fma_f32 v30, -v28, v28, v30\nv_max_f32 v30, 0, v30")
    late("v_cvt_pk_bf16_f32 v30, v30, v30\nv_lshlrev_b32 v30, 16, v30\nv_add_f32 v30, 0x3727c5ac, v30")
    late("v_cvt_pk_bf16_f32 v30, v30, v30\nv_lshlrev_b32 v30, 16, v30\nv_sqrt_f32 v30, v30")
    late("v_mov_b32 v24, 0x3f803f80\nv_mov_b32 v25, 0x3f803f80")
    late("v_cvt_pk_bf16_f32 v30, v30, v30\nv_lshlrev_b32 v31, 16, v30\nv_rcp_f32 v30, v31")
    late("s_nop 0\nv_mov_b32 v9, v30")
    late(f"v_mul_f32 v12, {LOG2E:#x}, v30")
    late(DS("ds_write_b64 v13, v[30:31]", "ho"))
    if ty == "D":
        late("v_lshrrev_b32 v26, 5, v1\nv_lshl_add_u32 v26, v26, 3, v11")
        late(DS("ds_write_b64 v26, v[24:25] offset:128", "ho"), DS("ds_write_b64 v26, v[24:25] offset:136", "ho"))

    slots = [[] for _ in range(nm + 1)]
    cen = []
    for ks in range(1, 32):
        cen += center(ks)
    k = 0
    for i in range(nm):
        take = cen[k:k + 6]
        slots[i] += take
        k += 6
        if k >= len(cen):
            slots[i + 1] += late.ops
            break

    def pack(kind, j):
        a = ACC + 16 * j
        o = []
        if kind in ("kv", "q"):
            sc = "v12" if (kind == "q" or j < 2) else "v9"
            for r in range(16):
                o += ops(f"v_mul_f32 v{a + r}, {sc}, v{a + r}")
        t = 16 + 8 * (j & 1)
        for r in range(8):
            o += ops(f"v_cvt_pk_bf16_f32 v{t + r}, v{a + 2 * r}, v{a + 2 * r + 1}")
        if kind == "kv" and j >= 2:
            for q in range(4):
                o.append(DS(f"ds_write_b64 v11, {vr(t + 2 * q, 2)} offset:{(j & 1) * 64 + q * 16}", "ho"))
        else:
            o.append(DS(f"ds_write_b128 v10, {vr(t, 4)} offset:{j * 2048}", "ho"))
            o.append(DS(f"ds_write_b128 v10, {vr(t + 4, 4)} offset:{j * 2048 + 1024}", "ho"))
        return o

    last = {}
    for i, (u, kind, nch, j, ks) in enumerate(order):
        last[(u, j)] = i
    pend, tail_ops = [], []
    first = {}
    for i, (u, kind, nch, j, ks) in enumerate(order):
        first.setdefault((u, j), i)
    cur = 0
    for (u, j), li in sorted(last.items(), key=lambda x: x[1]):
        po = pack(UNITS[ty][u][0], j)
        i = max(li + 3, cur)
        k = 0
        while k < len(po):
            if i >= nm:
                tail_ops += po[k:]
                break
            slots[i] += po[k:k + 5]
            k += 5
            i += 1
        cur = i - 1
        assert cur < first.get((u + 1, j), 1 << 30), (ty, u, j, cur)

    started = set()
    for i, (u, kind, nch, j, ks) in enumerate(order):
        if i % 4 == 0:
            s(WDS(f"f{min(i + 3, nm - 1)}"))
        a = vr(ACC + 16 * j, 16)
        c = a if (u, j) in started else "0"
        started.add((u, j))
        s(f"v_mfma_f32_32x32x16_bf16 {a}, {vr(WF + 4 * (i % 8), 4)}, {vr(XN + 4 * ks, 4)}, {c}")
        if i + 8 < nm:
            s(reads(i + 8))
        s(slots[i])
    s(st())
    s(tail_ops)
    s(WDS("ho"), "s_barrier")
    if ty == "Q":
        s("s_barrier")
    s(st())
    s(st.dump(WS_STAMP))
    s("s_endpgm")
    return s


def poll(label, load, cmp_not_ready):
    o = Stream()
    o("s_mov_b32 s58, 0")
    o(f"{label}:")
    o(load, "s_waitcnt vmcnt(0)", cmp_not_ready)
    o(f"s_cmp_eq_u64 vcc, 0\ns_cbranch_scc1 {label}_ok")
    o(f"s_add_u32 s58, s58, 1\ns_cmp_lt_u32 s58, 0x40000\ns_cbranch_scc1 {label}")
    o(f"{label}_ok:")
    return o.ops


def softmax_ops(C, P, T):
    o = Stream()
    a, b = T, T + 1
    o(f"v_max3_f32 v{a}, v{C}, v{C + 1}, v{C + 2}\nv_max3_f32 v{b}, v{C + 8}, v{C + 9}, v{C + 10}")
    o(f"v_max3_f32 v{a}, v{a}, v{C + 3}, v{C + 4}\nv_max3_f32 v{b}, v{b}, v{C + 11}, v{C + 12}")
    o(f"v_max3_f32 v{a}, v{a}, v{C + 5}, v{C + 6}\nv_max3_f32 v{b}, v{b}, v{C + 13}, v{C + 14}")
    o(f"v_max_f32 v{a}, v{a}, v{C + 7}\nv_max_f32 v{b}, v{b}, v{C + 15}")
    o(f"v_permlane32_swap_b32 v{a}, v{b}\nv_max_f32 v{a}, v{a}, v{b}\nv_mov_b32 v{b}, v{a}\nv_permlane32_swap_b32 v{a}, v{b}")
    for r in range(16):
        o(f"v_sub_f32 v{C + r}, v{C + r}, v{a if r < 8 else b}")
    for r in range(16):
        o(f"v_exp_f32 v{C + r}, v{C + r}")
    o(f"v_add_f32 v{a}, v{C}, v{C + 1}\nv_add_f32 v{b}, v{C + 8}, v{C + 9}")
    for r in range(2, 8):
        o(f"v_add_f32 v{a}, v{a}, v{C + r}\nv_add_f32 v{b}, v{b}, v{C + 8 + r}")
    o(f"v_permlane32_swap_b32 v{a}, v{b}\nv_add_f32 v{a}, v{a}, v{b}\nv_rcp_f32 v{a}, v{a}\ns_nop 0")
    o(f"v_mov_b32 v{b}, v{a}\nv_permlane32_swap_b32 v{a}, v{b}")
    for r in range(16):
        o(f"v_mul_f32 v{C + r}, v{C + r}, v{a if r < 8 else b}")
    for r in range(8):
        o(f"v_cvt_pk_bf16_f32 v{P + r}, v{C + 2 * r}, v{C + 2 * r + 1}")
    return o.ops


def helper1(ty):
    st = Stamper()
    s = Stream()
    s(st.start())
    stages = stage_table(ty)
    s(srd(12, 42, 0x180000))
    s(f"s_cmp_lt_u32 {S_W}, 2\ns_cselect_b32 s16, s50, s52\ns_cselect_b32 s17, s51, s53\ns_mov_b32 s18, 0x1c0000\ns_mov_b32 s19, 0x20000")
    s(srd(24, 58, 256))
    s(srd(28, 44, 0x4000))
    s(f"s_lshr_b32 s32, {S_W}, 1\ns_and_b32 s33, {S_W}, 1")
    s("v_lshrrev_b32 v10, 3, v1\nv_and_b32 v11, 7, v1\nv_bfe_u32 v12, v1, 4, 1")
    s("s_lshl_b32 s34, s33, 3\nv_add_u32 v10, s34, v10")
    s("s_lshl_b32 s35, s32, 2\nv_lshlrev_b32 v13, 1, v12\nv_xor_b32 v13, s35, v13\nv_xor_b32 v13, v13, v11")
    s("v_mul_u32_u24 v14, 3584, v10\nv_lshl_add_u32 v2, v13, 4, v14")
    s("v_lshlrev_b32 v13, 2, v12\nv_xor_b32 v13, v13, v11\nv_mul_u32_u24 v14, 3072, v10\nv_lshl_add_u32 v3, v13, 4, v14")
    if ty == "D":
        s("v_lshrrev_b32 v10, 2, v1\nv_and_b32 v11, 3, v1\ns_lshl_b32 s35, s32, 1\nv_xor_b32 v11, s35, v11")
        s("v_mul_u32_u24 v14, 3584, v10\nv_lshl_add_u32 v4, v11, 4, v14")
    if ty == "D":
        s(f"s_lshl_b32 s48, {S_P}, 7\ns_add_u32 s48, s48, 1024\ns_lshl_b32 s35, s32, 10\ns_add_u32 s48, s48, s35")
        s(f"s_lshl_b32 s49, {S_P}, 7\ns_add_u32 s49, s49, 2048")
        s(f"s_lshl_b32 s50, {S_P}, 6\ns_add_u32 s50, s50, 3072\ns_mul_i32 s35, s33, {16 * 3584}\ns_add_u32 s50, s50, s35")
        s("s_lshl_b32 s52, s33, 11\ns_lshl_b32 s35, s32, 10\ns_add_u32 s52, s52, s35")
    else:
        s(f"s_lshl_b32 s48, {S_P}, 8\ns_add_u32 s49, s48, 128")
        s(f"s_lshl_b32 s50, {S_P}, 7\ns_mul_i32 s35, s32, {16 * 3072}\ns_add_u32 s50, s50, s35")
    s(f"s_lshl_b32 s51, {S_W}, 10")

    def dma(n):
        u, kind, s0, per = stages[n]
        stride = 3072 if kind in ("kv", "q") else 3584
        rsrc = SRD_QKV if kind in ("kv", "q") else SRD_GU
        voff = {"gu": "v2", "kv": "v3", "q": "v3", "half": "v4"}[kind]
        lbase = "s52" if kind == "half" else "s51"
        groups = []
        for q in range(4):
            g = []
            if per == 4:
                grp, kk = s0 // 4, q
            else:
                grp, kk = s0 // 4 + q // 2, 2 * (q % 2)
            if q == 0 or (per == 8 and q == 2):
                g += ops(f"s_add_u32 s53, {S_ROT}, {grp}\ns_and_b32 s53, s53, 7\ns_mul_i32 s53, s53, {64 * stride}\ns_add_u32 s53, s53, s{48 + u}")
            g += ops(f"s_add_u32 m0, {lbase}, {(n % RING) * 16384 + q * 4096}")
            g += ops(f"s_add_u32 s54, s53, {kk * 16 * stride}")
            g.append(VM(f"buffer_load_dwordx4 {voff}, {rsrc}, s54 offen lds", f"w{n}"))
            groups.append(g)
        return groups

    s(dma(0), dma(1))
    s("s_getpc_b64 s[40:41]\nL1_pc_" + ty + ":")
    s(f"s_sub_u32 s40, s40, L1_pc_{ty}-L1_code\ns_subb_u32 s41, s41, 0")
    s("s_lshr_b32 s35, s2, 3\ns_lshl_b32 s35, s35, 4\nv_and_b32 v10, 15, v1\nv_add_u32 v10, s35, v10\nv_lshlrev_b32 v10, 7, v10")
    s("v_min_u32 v10, L1_code_end-L1_code-4, v10")
    s(VM("global_load_dword v255, v10, s[40:41]"))

    s(f"s_lshl_b32 s44, {S_W}, 13\ns_add_u32 s44, s44, {L_H}\nv_lshl_add_u32 v5, v1, 4, s44")
    s("v_lshlrev_b32 v6, 4, v1\nv_mov_b32 v9, 0xffff0000")
    s(f"s_lshl_b32 s55, {S_TG}, 2\ns_add_u32 s55, s55, {S_W}\ns_mul_i32 s55, s55, {144 * 1024}")
    s("v_and_b32 v10, 31, v1")
    s(f"s_lshl_b32 s44, {S_W}, 8\ns_add_u32 s44, s44, {L_RS}\nv_lshl_add_u32 v15, v10, 3, s44")

    WPH, KF, CC, PP, TT = 16, 32, 64, 128, 160
    work = [[] for _ in range(22)]

    w0 = Stream()
    w0(f"s_lshl_b32 s44, {S_P}, 11\ns_lshl_b32 s35, s33, 10\ns_add_u32 s44, s44, s35\ns_add_u32 m0, s35, {L_WPHI}")
    w0(VM(f"buffer_load_dwordx4 v6, {SRD_T}, s44 offen lds", "wphi"))
    if ty == "D":
        w0(f"s_lshl_b32 s44, {S_P}, 8\ns_lshl_b32 s35, {S_TG}, 4\ns_add_u32 s44, s44, s35\ns_add_u32 s56, s44, {WS_KVF}")
        w0(f"s_cmp_eq_u32 {S_W}, 0\ns_cselect_b32 s35, 4, 0")
        w0(f"v_cmp_gt_u32 vcc, s35, v1\nv_mov_b32 v10, {OOB:#x}\nv_lshlrev_b32 v11, 2, v1\nv_cndmask_b32 v13, v10, v11, vcc")
        w0(f"v_cmp_eq_u32 vcc, 0, v1\nv_mov_b32 v11, 0\nv_cndmask_b32 v12, v10, v11, vcc")
        w0(VM(f"buffer_store_dword v11, v13, {SRD_WS}, s56 offen sc1", "clr"))
        w0(f"s_lshl_b32 s35, {S_W}, 2\ns_add_u32 s56, s56, s35")
    work[0] += w0.ops + [WVM("wphi")]
    w1 = Stream()
    w1("v_lshrrev_b32 v10, 5, v1\nv_bfe_u32 v11, v1, 2, 2\nv_and_b32 v13, 3, v1")
    w1(f"v_lshlrev_b32 v10, 7, v10\nv_lshl_add_u32 v10, v11, 5, v10\nv_lshl_add_u32 v10, v13, 3, v10\nv_add_u32 v10, {L_WPHI}, v10")
    for h in range(4):
        w1(DS(f"ds_read_b64_tr_b16 {vr(WPH + 4 * h, 2)}, v10 offset:{h * 512}", "wp"))
        w1(DS(f"ds_read_b64_tr_b16 {vr(WPH + 4 * h + 2, 2)}, v10 offset:{h * 512 + 256}", "wp"))
    w1("v_bfe_u32 v11, v1, 4, 1\nv_mul_u32_u24 v11, 0x8000, v11\nv_lshl_add_u32 v11, v11, 16, v11")
    w1(WDS("wp"))
    for r in range(16):
        w1(f"v_xor_b32 v{WPH + r}, v11, v{WPH + r}")
    work[1] += w1.ops
    if ty == "D":
        w2 = Stream()
        w2(WVM("clr"))
        w2(f"s_lshl_b32 s44, {S_P}, 4\ns_add_u32 s44, s44, {S_TG}\ns_cmp_eq_u32 {S_W}, 0\ns_cselect_b32 s44, s44, 0x1000")
        w2("v_mov_b32 v11, 1")
        w2(VM(f"buffer_store_byte v11, v12, {SRD_DBG}, s44 offen sc1", "clr2"))
        work[2] += w2.ops

    def rs_ops():
        o = Stream()
        o(DS("ds_read_b64 v[10:11], v15", "rs"), WDS("rs"))
        o(f"v_mul_f32 v7, {NLOG2E:#x}, v10\nv_mul_f32 v8, v11, v11")
        return o.ops

    def gu_block(j, ks_expr_sreg, ks_add):
        o = Stream()
        g = TT + 8 * (j & 1)
        o(DS(f"ds_read_b128 {vr(g, 4)}, v5 offset:{j * 2048}", f"g{j}"),
          DS(f"ds_read_b128 {vr(g + 4, 4)}, v5 offset:{j * 2048 + 1024}", f"g{j}"), WDS(f"g{j}"))
        t = TT + 16
        hreg = TT + 40 + 4 * (j & 1)
        for pr in range(2):
            for r in range(2):
                x = g + 2 * pr + r
                o(f"v_lshlrev_b32 v{t + 2 * r}, 16, v{x}\nv_and_b32 v{t + 2 * r + 1}, v9, v{x}")
                o(f"v_lshlrev_b32 v{t + 4 + 2 * r}, 16, v{x + 4}\nv_and_b32 v{t + 5 + 2 * r}, v9, v{x + 4}")
            for e in range(4):
                o(f"v_mul_f32 v{t + 8 + e}, v7, v{t + e}")
            for e in range(4):
                o(f"v_exp_f32 v{t + 8 + e}, v{t + 8 + e}")
            for e in range(4):
                o(f"v_mul_f32 v{t + e}, v{t + e}, v{t + 4 + e}")
            for e in range(4):
                o(f"v_fma_f32 v{t + 8 + e}, v{t + 8 + e}, v8, v8")
            for e in range(4):
                o(f"v_rcp_f32 v{t + 8 + e}, v{t + 8 + e}")
            o("s_nop 0")
            for e in range(4):
                o(f"v_mul_f32 v{t + e}, v{t + e}, v{t + 8 + e}")
            for r in range(2):
                o(f"v_cvt_pk_bf16_f32 v{hreg + 2 * pr + r}, v{t + 2 * r}, v{t + 2 * r + 1}")
        o(f"s_add_u32 s44, {ks_expr_sreg}, {ks_add * 1024}")
        o(VM(f"buffer_store_dwordx4 {vr(hreg, 4)}, v6, {SRD_WS}, s44 offen sc1", "h"))
        return o.ops

    def proj_ops():
        o = Stream()
        for j in range(2):
            o(DS(f"ds_read_b128 {vr(KF + 8 * j, 4)}, v5 offset:{j * 2048}", "kf"),
              DS(f"ds_read_b128 {vr(KF + 8 * j + 4, 4)}, v5 offset:{j * 2048 + 1024}", "kf"))
        o(WDS("kf"))
        for h in range(4):
            o(f"v_mfma_f32_32x32x16_bf16 {vr(CC + 16 * h, 16)}, {vr(WPH + 4 * h, 4)}, {vr(KF + 4 * h, 4)}, 0")
        return o.ops

    tail = Stream()
    if ty == "D":
        work[9] += rs_ops() + proj_ops()
        a = Stream()
        a("v_and_b32 v10, 31, v1\nv_lshrrev_b32 v11, 5, v1")
        a(f"s_lshl_b32 s35, {S_W}, 5\nv_add_u32 v10, s35, v10\nv_mul_u32_u24 v10, {PHI_RS}, v10\nv_lshl_add_u32 v10, v11, 3, v10\nv_add_u32 v13, {L_PHI}, v10")
        work[9] += a.ops
        for h in range(4):
            o = softmax_ops(CC + 16 * h, PP + 8 * h, TT)
            wr = [DS(f"ds_write_b64 v13, {vr(PP + 8 * h + 2 * q, 2)} offset:{h * PHI_HS + q * 16}", "phi") for q in range(4)]
            if h == 0:
                work[9] += o
                work[10] += wr
            else:
                work[9 + h] += o + wr
        work[12] += [WDS("phi")]
        k = Stream()
        k("v_lshrrev_b32 v10, 5, v1\nv_bfe_u32 v11, v1, 2, 2\nv_lshl_add_u32 v10, v10, 3, v11\nv_and_b32 v11, 3, v1\nv_bfe_u32 v14, v1, 4, 1")
        k(f"v_mul_u32_u24 v160, {PHI_RS}, v10\nv_lshl_add_u32 v160, v14, 5, v160\nv_lshl_add_u32 v160, v11, 3, v160")
        k(f"s_mul_i32 s35, {S_W}, {PHI_HS}\ns_add_u32 s35, s35, {L_PHI}\nv_add_u32 v160, s35, v160")
        k(f"v_mul_u32_u24 v161, {V_RS}, v10\nv_lshl_add_u32 v161, v11, 3, v161")
        k(f"s_lshl_b32 s35, {S_W}, 5\nv_mov_b32 v162, s35\nv_mov_b32 v163, 128\nv_cmp_eq_u32 vcc, s33, v14")
        k(f"v_cndmask_b32 v162, v163, v162, vcc\nv_add_u32 v161, v161, v162\nv_add_u32 v161, {L_V}, v161")
        for kk in range(8):
            k(DS(f"ds_read_b64_tr_b16 {vr(CC + 8 * kk, 2)}, v160 offset:{kk * 16 * PHI_RS}", f"kv{kk}"),
              DS(f"ds_read_b64_tr_b16 {vr(CC + 8 * kk + 2, 2)}, v160 offset:{kk * 16 * PHI_RS + 4 * PHI_RS}", f"kv{kk}"),
              DS(f"ds_read_b64_tr_b16 {vr(CC + 8 * kk + 4, 2)}, v161 offset:{kk * 16 * V_RS}", f"kv{kk}"),
              DS(f"ds_read_b64_tr_b16 {vr(CC + 8 * kk + 6, 2)}, v161 offset:{kk * 16 * V_RS + 4 * V_RS}", f"kv{kk}"))
            if kk >= 2:
                q = kk - 2
                k(WDS(f"kv{q}"), f"v_mfma_f32_32x32x16_bf16 {vr(KF, 16)}, {vr(CC + 8 * q, 4)}, {vr(CC + 8 * q + 4, 4)}, {vr(KF, 16) if q else 0}")
        for q in (6, 7):
            k(WDS(f"kv{q}"), f"v_mfma_f32_32x32x16_bf16 {vr(KF, 16)}, {vr(CC + 8 * q, 4)}, {vr(CC + 8 * q + 4, 4)}, {vr(KF, 16)}")
        k(f"s_lshl_b32 s44, {S_P}, 1\ns_add_u32 s44, s44, s32\ns_lshl_b32 s44, s44, 4\ns_add_u32 s44, s44, {S_TG}")
        k(f"s_lshl_b32 s45, s44, 11\ns_add_u32 s45, s45, {WS_KVP}\ns_lshl_b32 s44, s44, 7\ns_add_u32 s44, s44, {WS_ZP}")
        k(f"v_lshrrev_b32 v164, 4, v1\nv_lshl_add_u32 v164, v164, 5, s44\nv_mov_b32 v165, {OOB:#x}\nv_and_b32 v166, 15, v1")
        k("v_add_u32 v167, s45, v6\nv_cmp_eq_u32 s[46:47], 0, v166\nv_cndmask_b32 v164, v165, v164, s[46:47]")
        k("v_add_u32 v168, 16, v164\nv_add_u32 v169, 1024, v167")
        k("v_cndmask_b32 v164, v164, v167, vcc\nv_cndmask_b32 v168, v168, v169, vcc")
        for r in range(8):
            k(f"v_cvt_pk_bf16_f32 v{PP + r}, v{KF + 2 * r}, v{KF + 2 * r + 1}")
        k(VM(f"buffer_store_dwordx4 {vr(PP, 4)}, v164, {SRD_WS}, 0 offen sc1", "kvp"),
          VM(f"buffer_store_dwordx4 {vr(PP + 4, 4)}, v168, {SRD_WS}, 0 offen sc1", "kvp"))
        work[13] += k.ops
        f = Stream()
        f(WVM("kvp"), "v_mov_b32 v11, 1")
        f(VM(f"buffer_store_dword v11, v12, {SRD_WS}, s56 offen sc1", "kvf"))
        work[14] += f.ops
        work[16] += ops(f"s_lshl_b32 s57, {S_P}, 12\ns_add_u32 s57, s57, s55")
        work[17] += gu_block(0, "s57", 64) + gu_block(1, "s57", 65)
        work[18] += gu_block(2, "s57", 66) + gu_block(3, "s57", 67)
        tail(f"s_lshl_b32 s57, {S_P}, 11\ns_add_u32 s57, s57, s55")
        tail(gu_block(0, "s57", 96), gu_block(1, "s57", 97))
    else:
        work[8] += ops(f"s_lshl_b32 s57, {S_P}, 13\ns_add_u32 s57, s57, s55")
        work[9] += rs_ops()
        for j in range(4):
            work[9 + j] += gu_block(j, "s57", j)
        work[17] += gu_block(0, "s57", 4) + gu_block(1, "s57", 5)
        work[18] += gu_block(2, "s57", 6) + gu_block(3, "s57", 7)
        tail(proj_ops())
        for h in range(4):
            tail(softmax_ops(CC + 16 * h, PP + 8 * h, TT))
        tail(st())
        tail(f"s_lshl_b32 s44, {S_P}, 4\nv_and_b32 v10, 3, v1\nv_lshlrev_b32 v10, 2, v10\ns_mov_b32 s45, 0x01010101")
        tail(poll("L1_poll_clr", f"buffer_load_dword v11, v10, {SRD_DBG}, s44 offen sc1", "v_cmp_ne_u32 vcc, s45, v11"))
        tail(f"s_lshl_b32 s44, {S_P}, 8\ns_add_u32 s44, s44, {WS_KVF}\nv_lshlrev_b32 v10, 2, v1")
        tail(poll("L1_poll_kv", f"buffer_load_dword v11, v10, {SRD_WS}, s44 offen sc1", "v_cmp_ne_u32 vcc, 1, v11"))
        tail(st())
        LD = 176
        tail(f"s_lshl_b32 s44, {S_P}, 1\ns_add_u32 s44, s44, s32\ns_lshl_b32 s45, s44, 15\ns_lshl_b32 s35, s33, 10\ns_add_u32 s45, s45, s35\ns_add_u32 s45, s45, {WS_KVP}")
        tail(f"s_lshl_b32 s44, s44, 11\ns_lshl_b32 s35, s33, 4\ns_add_u32 s44, s44, s35\ns_add_u32 s44, s44, {WS_ZP}")
        tail("v_and_b32 v10, 15, v1\nv_lshrrev_b32 v11, 4, v1\nv_lshlrev_b32 v10, 7, v10\nv_lshl_add_u32 v10, v11, 5, v10")
        tail(VM(f"buffer_load_dwordx4 {vr(CC + 16, 4)}, v10, {SRD_WS}, s44 offen sc1", "z"))
        for t in range(16):
            tail(VM(f"buffer_load_dwordx4 {vr(LD + 4 * t, 4)}, v6, {SRD_WS}, s45 offen sc1", f"p{t}"))
            if t < 15:
                tail("s_add_u32 s45, s45, 2048")
        tail(WVM("z"))
        Z = CC + 24
        for r in range(4):
            tail(f"v_lshlrev_b32 v{Z + 2 * r}, 16, v{CC + 16 + r}\nv_and_b32 v{Z + 2 * r + 1}, v9, v{CC + 16 + r}")
        for sh in (8, 4, 2, 1):
            for r in range(8):
                tail(f"v_add_f32_dpp v{Z + r}, v{Z + r}, v{Z + r} row_ror:{sh} row_mask:0xf bank_mask:0xf")
        K = CC
        for t in range(16):
            tail(WVM(f"p{t}"))
            for r in range(4):
                x = LD + 4 * t + r
                if t == 0:
                    tail(f"v_lshlrev_b32 v{K + 2 * r}, 16, v{x}\nv_and_b32 v{K + 2 * r + 1}, v9, v{x}")
                else:
                    tail(f"v_lshlrev_b32 v{K + 8}, 16, v{x}\nv_and_b32 v{K + 9}, v9, v{x}")
                    tail(f"v_add_f32 v{K + 2 * r}, v{K + 2 * r}, v{K + 8}\nv_add_f32 v{K + 2 * r + 1}, v{K + 2 * r + 1}, v{K + 9}")
        tail("v_bfe_u32 v10, v1, 4, 1\nv_cmp_eq_u32 vcc, 0, v10")
        for r in range(4):
            tail(f"v_cvt_pk_bf16_f32 v{K + 8 + r}, v{K + 2 * r}, v{K + 2 * r + 1}\nv_cvt_pk_bf16_f32 v{K + 12 + r}, v{Z + 2 * r}, v{Z + 2 * r + 1}")
        for r in range(4):
            tail(f"v_cndmask_b32 v{K + r}, v{K + 12 + r}, v{K + 8 + r}, vcc\nv_cndmask_b32 v{K + 4 + r}, v{K + 8 + r}, v{K + 12 + r}, vcc")
        tail(f"s_lshl_b32 s44, s32, 12\ns_lshl_b32 s35, s33, 10\ns_add_u32 s44, s44, s35\ns_add_u32 s44, s44, {L_KVA}\nv_add_u32 v10, s44, v6")
        tail(DS(f"ds_write_b128 v10, {vr(K, 4)}", "ka"), DS(f"ds_write_b128 v10, {vr(K + 4, 4)} offset:2048", "ka"), WDS("ka"))
        tail("s_barrier")
        tail(f"v_add_u32 v10, {L_KVA}, v6")
        for h in range(4):
            for fr in range(2):
                tail(DS(f"ds_read_b128 {vr(LD + 8 * h + 4 * fr, 4)}, v10 offset:{h * 2048 + fr * 1024}", "kb"))
        tail(WDS("kb"))
        for h in range(4):
            c = vr(CC + 16 * h, 16)
            tail(f"v_mfma_f32_32x32x16_bf16 {c}, {vr(LD + 8 * h, 4)}, {vr(PP + 8 * h, 4)}, 0")
            tail(f"v_mfma_f32_32x32x16_bf16 {c}, {vr(LD + 8 * h + 4, 4)}, {vr(PP + 8 * h + 4, 4)}, {c}")
        tail(f"s_lshl_b32 s57, {S_P}, 12\ns_add_u32 s57, s57, s55")
        for h in range(4):
            c = CC + 16 * h
            num, den = (c, c + 8) if h % 2 == 0 else (c + 8, c)
            tail(f"v_add_f32 v{den}, 0x358637bd, v{den}\nv_rcp_f32 v{den}, v{den}\ns_nop 0")
            for r in range(8):
                tail(f"v_mul_f32 v{num + r}, v{num + r}, v{den}")
            for r in range(4):
                tail(f"v_cvt_pk_bf16_f32 v{TT + 4 * h + r}, v{num + 2 * r}, v{num + 2 * r + 1}")
            tail(f"s_add_u32 s44, s57, {(112 + h) * 1024}")
            tail(VM(f"buffer_store_dwordx4 {vr(TT + 4 * h, 4)}, v6, {SRD_WS}, s44 offen sc1", "o"))

    for n in range(20):
        s(WVM(f"w{n}"))
        s("s_barrier")
        if n % 4 == 0:
            s(st())
        todo = [2, 3, 4] if n == 0 else ([n + 4] if n + 4 < 20 else [])
        groups = [g for m in todo for g in dma(m)]
        w = work[n]
        if groups:
            per = -(-len(w) // len(groups))
            s(interleave(groups, w, per=per))
        else:
            s(w)
    s(st())
    s("s_barrier")
    s(st())
    s(tail)
    s(st())
    s(st.dump(WS_STAMP))
    s("s_endpgm")
    return s


def kernel1():
    out = ["L1_code:"]
    p = prologue1()
    p(f"s_cmp_ge_u32 {S_WAVE}, 4\ns_cbranch_scc1 L1_helper")
    p("s_cmp_eq_u32 s39, 1\ns_cbranch_scc1 L1_cQ\ns_branch L1_cD")
    p("L1_helper:\ns_cmp_eq_u32 s39, 1\ns_cbranch_scc1 L1_hQ\ns_branch L1_hD")
    p("L1_end:\ns_endpgm")
    out += p.finalize()
    for lab, st in (("L1_cD", compute1("D")), ("L1_cQ", compute1("Q")), ("L1_hD", helper1("D")), ("L1_hQ", helper1("Q"))):
        out += [".p2align 6", lab + ":"] + st.finalize()
    out += ["L1_code_end:"]
    return out


RED_U = 1024 + 32
RED_T = 8 * RED_U
RED_W = 2 * RED_T


def ksteps():
    out = []
    for i in range(4):
        out.append((i, 8, "d", 16 * i, 128))
    for i in range(4):
        out.append((4 + i, 8, "d", 64 + 16 * i, 128))
    for i in range(4):
        out.append((64 + i, 4, "d", 1024 + 16 * i, 64))
    for i in range(2):
        out.append((96 + i, 2, "d", 1536 + 16 * i, 32))
    for i in range(4):
        out.append((112 + i, 4, "o", 16 * i, 64))
    return out


def kernel2():
    st = Stamper()
    s = Stream()
    s("s_cmp_ge_u32 s2, 256\ns_cbranch_scc1 L2_end")
    s(st.start())
    s("s_load_dwordx16 s[40:55], s[0:1], 0\ns_load_dwordx4 s[56:59], s[0:1], 64\ns_load_dwordx2 s[60:61], s[0:1], 80")
    s("v_lshrrev_b32 v2, 6, v0\nv_and_b32 v1, 63, v0")
    s(f"v_readfirstlane_b32 {S_WAVE}, v2")
    s("s_and_b32 s62, s2, 7\ns_lshr_b32 s63, s2, 3")
    s("s_lshl_b32 s5, s62, 2\ns_lshr_b32 s6, s63, 3\ns_add_u32 s5, s5, s6\ns_and_b32 s6, s63, 7")
    s("s_waitcnt lgkmcnt(0)")
    s(srd(8, 40, 0x200000), srd(12, 54, 0x1C0000), srd(16, 46, 0x80000), srd(20, 60, WS_SIZE), srd(24, 56, 0x200000))
    s("v_lshrrev_b32 v10, 3, v1\nv_and_b32 v11, 7, v1\nv_bfe_u32 v12, v1, 4, 1\nv_lshlrev_b32 v12, 2, v12\nv_xor_b32 v12, v12, v11")
    s("v_lshlrev_b32 v13, 10, v10\nv_lshl_add_u32 v2, v12, 4, v13\ns_lshl_b32 s28, s6, 7\nv_add_u32 v2, s28, v2")
    s("v_lshlrev_b32 v3, 4, v1")
    s(f"s_lshl_b32 s29, s5, 16\ns_lshl_b32 s30, {S_WAVE}, 13\ns_add_u32 s29, s29, s30\ns_add_u32 s29, s29, s28")
    s("v_lshl_add_u32 v6, v11, 4, v13\nv_add_u32 v6, s29, v6")
    s(VM("buffer_load_dwordx4 v[16:19], v6, s[8:11], 0 offen", "res"))
    D = 6
    SLOT = 2048
    s(f"s_mul_i32 s31, {S_WAVE}, {D * SLOT}")
    s("v_bfe_u32 v10, v1, 4, 1\nv_bfe_u32 v11, v1, 2, 2\nv_and_b32 v12, 3, v1\nv_bfe_u32 v13, v1, 3, 1\nv_lshrrev_b32 v14, 5, v1")
    s("v_lshlrev_b32 v15, 9, v14\nv_lshl_add_u32 v15, v11, 7, v15\nv_lshl_add_u32 v13, v13, 1, v10\nv_lshl_add_u32 v15, v13, 5, v15\nv_lshl_add_u32 v15, v12, 3, v15")
    s("v_add_u32 v4, s31, v15\nv_xor_b32 v5, 64, v4")
    s(f"s_mul_i32 s32, s5, {2 * 144 * 1024}")
    for m, r in ((8, 33), (4, 34), (2, 35)):
        s(f"s_mul_i32 s{r}, {S_WAVE}, {m * 1024}\ns_add_u32 s{r}, s{r}, s32")
    for m, r in ((128, 36), (64, 37), (32, 38)):
        s(f"s_mul_i32 s{r}, {S_WAVE}, {m * 1024}")
    areg = {8: 33, 4: 34, 2: 35}
    wreg = {128: 36, 64: 37, 32: 38}
    KS = ksteps()
    HB, WB, AC = 32, 96, 128

    def issue(i):
        a0, am, mat, r0, rm = KS[i]
        rs = "s[12:15]" if mat == "d" else "s[16:19]"
        o = []
        for half in range(2):
            o += ops(f"s_add_u32 m0, s31, {(i % D) * SLOT + half * 1024}\ns_add_u32 s39, s{wreg[rm]}, {(r0 + 8 * half) * 1024}")
            o.append(VM(f"buffer_load_dwordx4 v2, {rs}, s39 offen lds", f"k{i}"))
        for tb in range(2):
            o += ops(f"s_add_u32 s39, s{areg[am]}, {(tb * 144 + a0) * 1024}")
            o.append(VM(f"buffer_load_dwordx4 {vr(HB + 8 * (i % D) + 4 * tb, 4)}, v3, s[20:23], s39 offen sc1", f"k{i}"))
        return o

    def wread(i):
        o = []
        for cb in range(2):
            d = WB + 8 * (i % 2) + 4 * cb
            o.append(DS(f"ds_read_b64_tr_b16 {vr(d, 2)}, v{4 + cb} offset:{(i % D) * SLOT}", f"r{i}"))
            o.append(DS(f"ds_read_b64_tr_b16 {vr(d + 2, 2)}, v{4 + cb} offset:{(i % D) * SLOT + 1024}", f"r{i}"))
        return o

    n = len(KS)
    for i in range(D - 1):
        s(issue(i))
    s(WVM("k0"), st(), wread(0))
    for i in range(n):
        if i + 1 < n:
            s(WVM(f"k{i + 1}"), wread(i + 1))
        s(WDS(f"r{i}"))
        if i + D - 1 < n:
            s(issue(i + D - 1))
        for cb in range(2):
            for tb in range(2):
                a = vr(AC + 16 * (2 * tb + cb), 16)
                s(f"v_mfma_f32_32x32x16_bf16 {a}, {vr(WB + 8 * (i % 2) + 4 * cb, 4)}, {vr(HB + 8 * (i % D) + 4 * tb, 4)}, {a if i else 0}")
    s(st())
    s("s_barrier")
    s(f"s_mul_i32 s39, {S_WAVE}, {RED_W}\nv_add_u32 v4, s39, v3")
    for tb in range(2):
        for cb in range(2):
            for i in range(4):
                s(DS(f"ds_write_b128 v4, {vr(AC + 16 * (2 * tb + cb) + 4 * i, 4)} offset:{tb * RED_T + (cb * 4 + i) * RED_U}", "rw"))
    s(f"s_lshr_b32 s39, {S_WAVE}, 2\ns_mul_i32 s39, s39, {RED_T}\ns_and_b32 s40, {S_WAVE}, 3\ns_lshl_b32 s40, s40, 7\ns_add_u32 s39, s39, s40")
    s(f"v_and_b32 v10, 7, v1\nv_mul_u32_u24 v10, {RED_U}, v10\nv_lshrrev_b32 v11, 3, v1\nv_lshl_add_u32 v10, v11, 4, v10\nv_add_u32 v4, s39, v10")
    s(f"v_add_u32 v5, {4 * RED_W}, v4")
    s(WDS("rw"), "s_barrier")
    for w in range(8):
        for hf in range(2):
            s(DS(f"ds_read_b128 {vr(32 + 8 * w + 4 * hf, 4)}, v{4 + w // 4} offset:{(w % 4) * RED_W + hf * 512}", f"s{w}"))
    s("v_mov_b32 v9, 0xffff0000")
    s(WVM("res"))
    for r in range(4):
        s(f"v_lshlrev_b32 v{20 + 2 * r}, 16, v{16 + r}\nv_and_b32 v{21 + 2 * r}, v9, v{16 + r}")
    for w in range(8):
        s(WDS(f"s{w}"))
        for r in range(8):
            s(f"v_add_f32 v{20 + r}, v{20 + r}, v{32 + 8 * w + r}")
    for r in range(4):
        s(f"v_cvt_pk_bf16_f32 v{16 + r}, v{20 + 2 * r}, v{21 + 2 * r}")
    s("buffer_store_dwordx4 v[16:19], v6, s[24:27], 0 offen")
    s(st())
    s(st.dump(WS_STAMP + 0x20000))
    s("L2_end:\ns_endpgm")
    return s.finalize()


def descriptor(name):
    return f""".amdhsa_kernel {name}
  .amdhsa_next_free_vgpr 256
  .amdhsa_next_free_sgpr 102
  .amdhsa_accum_offset 256
  .amdhsa_group_segment_fixed_size 0
  .amdhsa_kernarg_size 88
  .amdhsa_user_sgpr_count 2
  .amdhsa_user_sgpr_kernarg_segment_ptr 1
  .amdhsa_system_sgpr_workgroup_id_x 1
.end_amdhsa_kernel"""


def main(path):
    L = ["; generated by dev/gen1.py",
         "; @launch kernel=phase1_kernel grid=(256,1,1) block=(512,1,1) lds=163840",
         "; @launch kernel=phase2_kernel grid=(256,1,1) block=(512,1,1) lds=163840",
         '.amdgcn_target "amdgcn-amd-amdhsa--gfx950"', ".text"]
    for name, body in (("phase1_kernel", kernel1()), ("phase2_kernel", kernel2())):
        L += [f".globl {name}", ".p2align 8", f".type {name},@function", f"{name}:"] + body
    L += ['.section .rodata,"a"']
    for name in ("phase1_kernel", "phase2_kernel"):
        L += [".p2align 6", descriptor(name)]
    open(path, "w").write("\n".join(L) + "\n")


if __name__ == "__main__":
    main(sys.argv[1])
```
